```python
import torch

def _softmax(x, axis=-1):
    return torch.softmax(x, dim=axis)
def _gelu(x):
    return torch.nn.functional.gelu(x, approximate="tanh")
def _silu(x):
    return torch.nn.functional.silu(x)
def _sigmoid(x):
    return torch.sigmoid(x)
def _layernorm(x, axis=-1, eps=1e-5):
    m = x.mean(dim=axis, keepdim=True)
    v = x.var(dim=axis, keepdim=True, unbiased=False)
    return (x - m) / torch.sqrt(v + eps)
def _scatter_add(tgt, idx, src, axis=0):
    return tgt.clone().index_add_(axis, idx, src)
def _segment_sum(src, seg, n):
    out = torch.zeros((n,) + src.shape[1:], dtype=src.dtype)
    return out.index_add_(0, seg, src)
def _pad(x, pw):
    flat = tuple(v for pair in reversed(pw) for v in pair)
    return torch.nn.functional.pad(x, flat)

kernel_name = 'sequential_preLN__linear_attn_block__glu_gated_swiglu__prompt'

def setup_inputs():

    _w = (lambda a: (lambda t: t.to(torch.bfloat16) if t.is_floating_point() else t)(torch.as_tensor(a)))
    def _A_setup():
        B, S, D = 1, 2048, 640
        return {
            "x": _w((lambda *s: torch.randn(*s, dtype=torch.bfloat16) * 0.05)(B, S, D)),
            "wqkv": _w((lambda *s: torch.randn(*s, dtype=torch.bfloat16) * 0.05)(D, 3 * D)),
            "wo": _w((lambda *s: torch.randn(*s, dtype=torch.bfloat16) * 0.05)(D, D)),
        }
    _A_in = _A_setup()

    def _B_setup():
        B, S, D, F = 1, 2048, 640, 1536
        return {
            "x": _w((lambda *s: torch.randn(*s, dtype=torch.bfloat16) * 0.05)(B, S, D)),
            "w1": _w((lambda *s: torch.randn(*s, dtype=torch.bfloat16) * 0.2)(D, F) * (2.0 / D) ** 0.5),
            "w3": _w((lambda *s: torch.randn(*s, dtype=torch.bfloat16) * 0.2)(D, F) * (2.0 / D) ** 0.5),
            "w2": _w((lambda *s: torch.randn(*s, dtype=torch.bfloat16) * 0.2)(F, D) * (2.0 / F) ** 0.5),
        }
    _B_in = _B_setup()

    return {
        "A_x": _A_in["x"],
        "A_wqkv": _A_in["wqkv"],
        "A_wo": _A_in["wo"],
        "B_x": _B_in["x"],
        "B_w1": _B_in["w1"],
        "B_w3": _B_in["w3"],
        "B_w2": _B_in["w2"],
    }

def reference(A_x, A_wqkv, A_wo, B_x, B_w1, B_w3, B_w2):
    def _A_ref(x, wqkv, wo):
        B, S, D = x.shape
        H = 32; Dh = D // H
        qkv = (lambda x, *d: x.permute(*d))((x @ wqkv).reshape(B, S, 3, H, Dh), 2, 0, 3, 1, 4)
        q, k, v = qkv[0], qkv[1], qkv[2]
        phi = lambda t: torch.where(t > 0, t + 1, torch.exp(t)) + 1e-6
        pq, pk = phi(q), phi(k)
        kv = torch.einsum("bhsd,bhse->bhde", pk, v)
        z = torch.einsum("bhsd->bhd", pk)
        num = torch.einsum("bhqd,bhde->bhqe", pq, kv)
        den = torch.einsum("bhqd,bhd->bhq", pq, z)[..., None] + 1e-6
        o = num / den
        return (lambda x, *d: x.permute(*d))(o, 0, 2, 1, 3).reshape(B, S, D) @ wo

    def _B_ref(x, w1, w3, w2):
        gate = torch.einsum("bsd,df->bsf", x, w1)
        up = torch.einsum("bsd,df->bsf", x, w3)
        h = _silu(gate) * up
        out = torch.einsum("bsf,fd->bsd", h, w2)
        return out

    x = A_x
    h = x + _A_ref(_layernorm(x, axis=-1), A_wqkv, A_wo)
    h2 = h + _B_ref(_layernorm(h, axis=-1), B_w1, B_w3, B_w2)
    return h2
```

```python
import re

REG_RE = re.compile(r"^(-?)(?:abs\()?([vas])(?:\[(\d+):(\d+)\]|(\d+))\)?$")

def regs_of(tok):
    tok = tok.strip()
    if tok in ("vcc", "exec"):
        return {(tok, 0), (tok, 1)}
    if tok in ("vcc_lo", "exec_lo"):
        return {(tok[:-3], 0)}
    if tok in ("vcc_hi", "exec_hi"):
        return {(tok[:-3], 1)}
    if tok == "m0":
        return {("m0", 0)}
    m = REG_RE.match(tok)
    if not m:
        return set()
    k = m.group(2)
    if m.group(5) is not None:
        return {(k, int(m.group(5)))}
    return {(k, i) for i in range(int(m.group(3)), int(m.group(4)) + 1)}

TRANS = ("v_exp_f32", "v_log_f32", "v_rcp_f32", "v_rsq_f32", "v_sqrt_f32", "v_sin_f32", "v_cos_f32", "v_rcp_iflag_f32")

class Ins:
    def __init__(self, text):
        self.text = text
        body = text.split(";")[0].strip()
        parts = body.split(None, 1)
        self.op = parts[0]
        rest = parts[1] if len(parts) > 1 else ""
        toks = [t.strip() for t in rest.split(",")] if rest else []
        mods = ""
        if toks:
            last = toks[-1].split()
            toks[-1] = last[0] if last else ""
            mods = " ".join(last[1:])
            k = [i for i, t in enumerate(toks) if ":[" in t and not REG_RE.match(t)]
            if k:
                first = toks[k[0]].split()
                toks = toks[:k[0]] + [first[0]]
        self.toks, self.full = toks, body
        op = re.sub(r"_(e32|e64|dpp|sdwa)$", "", self.op)
        self.base = op
        R = [regs_of(t) for t in toks]
        self.wr, self.rd = set(), set()
        self.mfma = op.startswith("v_mfma")
        self.valu = op.startswith("v_") and not self.mfma
        self.vmem = op.startswith(("buffer_", "global_", "flat_"))
        self.ds = op.startswith("ds_")
        self.salu = op.startswith("s_")
        self.dpp = "dpp" in self.op or " row_" in body or "quad_perm" in body
        self.trans = op in TRANS
        self.dot = op.startswith("v_dot")
        self.ldsdma = self.vmem and (re.search(r"\blds\b", body) is not None or "_lds_" in op)
        self.store_data = set()
        U = lambda xs: set().union(*xs) if xs else set()
        if self.mfma:
            self.wr = R[0]; self.A, self.B, self.C = R[1], R[2], R[3]; self.rd = U(R[1:])
            self.passes = 8 if "32x32" in op else 4
        elif self.valu:
            if op.startswith("v_permlane") and "swap" in op:
                self.wr = R[0] | R[1]; self.rd = R[0] | R[1]
            elif op in ("v_add_co_u32", "v_sub_co_u32", "v_addc_co_u32", "v_subb_co_u32", "v_mad_u64_u32"):
                self.wr = R[0] | R[1]; self.rd = U(R[2:])
            elif op == "v_nop":
                pass
            else:
                self.wr = R[0]; self.rd = U(R[1:])
                if op in ("v_fmac_f32", "v_dot2c_f32_bf16", "v_pk_fmac_f16", "v_writelane_b32") or self.dpp:
                    self.rd |= R[0]
                if op.startswith("v_cmpx"):
                    self.wr |= regs_of("exec")
        elif self.ds:
            if op.startswith(("ds_read", "ds_bpermute", "ds_permute", "ds_swizzle")):
                self.wr = R[0]; self.rd = U(R[1:])
            else:
                self.rd = U(R)
            if "addtid" in op: self.rd |= {("m0", 0)}
        elif self.vmem:
            if self.ldsdma:
                self.rd = U(R) | {("m0", 0)}
            elif "_load_" in op:
                self.wr = R[0]; self.rd = U(R[1:])
            elif "_atomic_" in op and " sc0" in " " + mods:
                if op.startswith("global_"):
                    self.wr = R[0]; self.rd = U(R[1:])
                else:
                    self.wr = R[0]; self.rd = U(R)
            else:
                self.rd = U(R)
                if op.endswith(("x3", "x4")):
                    self.store_data = R[0] if op.startswith("buffer_") else R[1]
        elif self.salu:
            if op.startswith(("s_cmp", "s_waitcnt", "s_barrier", "s_nop", "s_branch", "s_cbranch", "s_endpgm", "s_setprio", "s_sleep", "s_bitcmp", "s_setreg")):
                self.rd = U(R)
            else:
                self.wr = R[0] if R else set(); self.rd = U(R[1:])
                if "saveexec" in op: self.wr |= regs_of("exec")
    def states(self):
        if self.op == "s_nop":
            return int(self.toks[0]) + 1
        return 1

def is_v(rs): return {r for r in rs if r[0] in "va" and len(r[0]) == 1}
def is_s(rs): return {r for r in rs if r[0] in ("s", "vcc")}

def required_gap(p, c):
    n = 0
    if p.mfma:
        big = 12 if p.passes == 8 else 8
        if c.mfma:
            if p.wr & (c.A | c.B): n = max(n, big)
            if p.wr & c.C and not (p.wr == c.C and p.passes == c.passes): n = max(n, big - 2)
            if p.wr & c.wr and not (p.wr & c.C): n = max(n, big)
        elif c.valu or c.vmem or c.ds:
            if p.wr & (c.rd | c.wr): n = max(n, big)
            if c.valu and p.C & c.wr: n = max(n, 7 if p.passes == 8 else 3)
    if p.valu:
        vw = is_v(p.wr); sw = is_s(p.wr)
        if c.mfma and vw & c.rd: n = max(n, 3 if p.dot else 2)
        if c.valu:
            if c.dpp and vw & c.rd: n = max(n, 2)
            if c.base.startswith("v_permlane") and vw & c.rd: n = max(n, 2)
            if c.base in ("v_readfirstlane_b32", "v_readlane_b32") and vw & c.rd: n = max(n, 1)
            if p.trans and vw & c.rd: n = max(n, 1)
            if sw & c.rd: n = max(n, 4 if c.base in ("v_readlane_b32", "v_writelane_b32") else 2)
            if c.base == "v_cndmask_b32" and len(c.toks) < 4 and ("vcc", 0) in sw: n = max(n, 2)
        if p.dot and (c.valu or c.vmem or c.ds) and vw & (c.rd | c.wr):
            same_acc = c.base == p.base and not (vw & set().union(*[regs_of(t) for t in c.toks[1:3]]))
            if not same_acc: n = max(n, 3)
        if c.vmem and sw & c.rd: n = max(n, 5)
        if ("exec", 0) in p.wr:
            if c.mfma or c.base.startswith(("v_permlane", "v_readlane", "v_readfirstlane")): n = max(n, 4)
            if c.dpp: n = max(n, 5)
    if p.store_data and (p.store_data & c.wr): n = max(n, 2 if (c.valu or c.mfma) else 1)
    if p.salu and ("m0", 0) in p.wr and ("m0", 0) in c.rd and (c.vmem or c.ds): n = max(n, 1)
    return n

class Asm:
    def __init__(self):
        self.items = []
        self._uid = 0
    def __call__(self, s):
        for l in s.split("\n"):
            t = l.strip()
            if not t: continue
            if t.endswith(":") or t.startswith((".", ";")):
                self.items.append(t)
            else:
                self.items.append(Ins(t))
    def uid(self, base):
        self._uid += 1
        return f"L{base}_{self._uid}"
    def fix_hazards(self):
        W = 16
        items = self.items
        total = 0
        def index():
            labels = {it[:-1]: i for i, it in enumerate(items) if isinstance(it, str) and it.endswith(":")}
            preds = {}
            for i, it in enumerate(items):
                if isinstance(it, Ins) and it.base.startswith(("s_branch", "s_cbranch")) and it.toks[0] in labels:
                    preds.setdefault(labels[it.toks[0]], []).append(i)
            return preds
        def walk(i, dist, c, seen, preds):
            need = 0
            j = i
            while j >= 0 and dist < W:
                it = items[j]
                if isinstance(it, str):
                    if j in preds:
                        for b in preds[j]:
                            if (b, dist) not in seen:
                                seen.add((b, dist))
                                need = max(need, walk(b, dist, c, seen, preds))
                    j -= 1
                    if j >= 0 and isinstance(items[j], Ins) and items[j].base in ("s_branch", "s_endpgm"):
                        break
                    continue
                need = max(need, required_gap(it, c) - dist)
                dist += it.states()
                j -= 1
            return need
        changed = True
        while changed:
            changed = False
            preds = index()
            i = 0
            while i < len(items):
                c = items[i]
                if isinstance(c, Ins) and not c.salu:
                    need = walk(i - 1, 0, c, set(), preds)
                    if need > 0:
                        items.insert(i, Ins(f"s_nop {need-1}"))
                        total += need
                        changed = True
                        preds = index()
                        i += 1
                i += 1
        return total
    def text(self):
        out = []
        for it in self.items:
            out.append(it if isinstance(it, str) else "    " + it.text)
        return "\n".join(out) + "\n"

class Counter:
    def __init__(self, a, name, maxv):
        self.a, self.name, self.maxv = a, name, maxv
        self.n = 0; self.done = 0; self.tags = {}
    def issue(self, text, tag=None):
        self.a(text); self.n += 1
        if tag is not None: self.tags[tag] = self.n
        return self.n
    def need(self, tag):
        k = self.tags[tag] if not isinstance(tag, int) else tag
        return None if k <= self.done else min(self.n - k, self.maxv)
    def wait(self, *tags):
        k = max(self.tags[t] if not isinstance(t, int) else t for t in tags)
        if k <= self.done: return
        left = min(self.n - k, self.maxv)
        self.a(f"s_waitcnt {self.name}({left})")
        self.done = self.n - left
    def drain(self):
        self.a(f"s_waitcnt {self.name}(0)"); self.done = self.n
    def reset(self):
        self.done = self.n

def vr(base, n=1, k="v"):
    return f"{k}{base}" if n == 1 else f"{k}[{base}:{base+n-1}]"
def ar(base, n=1): return vr(base, n, "a")
def sr(base, n=1): return vr(base, n, "s")

def kernel_header(name):
    return f".globl {name}\n.p2align 8\n.type {name},@function\n{name}:"

def kernel_desc(name, vgpr, sgpr, accum):
    return f""".p2align 6
.amdhsa_kernel {name}
  .amdhsa_next_free_vgpr {vgpr}
  .amdhsa_next_free_sgpr {sgpr}
  .amdhsa_accum_offset {accum}
  .amdhsa_group_segment_fixed_size 0
  .amdhsa_kernarg_size 80
  .amdhsa_user_sgpr_count 2
  .amdhsa_user_sgpr_kernarg_segment_ptr 1
  .amdhsa_system_sgpr_workgroup_id_x 1
.end_amdhsa_kernel
"""
```

```python
from asmgen import *

KVACC = 0x000000
FLAGS = 0x010000
STATS = 0x020000
WOS   = 0x100000
PQ    = 0x200000
HBUF  = 0x500000
W2S   = 0x800000
W13S  = 0xA00000
HH    = 0x1000000
STAMP = 0x1800000
WS_BYTES = 0x1900000

LOG2E = 0x3fb8aa3b
ONES2 = 0x3f803f80
EPS6  = 0x358637bd
EPS5  = 0x3727c5ac
INV640 = 0x3acccccd

S_WS, S_X, S_W, S_O = 4, 8, 12, 16
S_DBG = 20
S_WAVE = 22
S_PTR = 24
P_X, P_WQKV, P_WO, P_BX, P_W1, P_W3, P_W2, P_OUT, P_DBG, P_WS = [S_PTR + 2 * i for i in range(10)]

MF = "v_mfma_f32_16x16x32_bf16"

def srd(a, d, ptr, nbytes):
    a(f"s_mov_b32 s{d}, s{ptr}\ns_mov_b32 s{d+1}, s{ptr+1}\ns_mov_b32 s{d+2}, {nbytes}\ns_mov_b32 s{d+3}, 0x20000")

def prologue(a, end_label):
    a(f"s_load_dwordx16 s[{S_PTR}:{S_PTR+15}], s[0:1], 0")
    a(f"s_load_dwordx4 s[{S_PTR+16}:{S_PTR+19}], s[0:1], 64")
    a("s_cmp_ge_u32 s2, 256")
    a(f"s_cbranch_scc1 {end_label}")
    a("v_lshrrev_b32 v1, 6, v0")
    a("v_and_b32 v0, 63, v0")
    a(f"v_readfirstlane_b32 s{S_WAVE}, v1")
    a("s_waitcnt lgkmcnt(0)")
    srd(a, S_WS, P_WS, WS_BYTES)
    srd(a, S_X, P_X, 2048 * 1280)
    a(f"s_mov_b32 s{S_DBG}, s{P_DBG}\ns_mov_b32 s{S_DBG+1}, s{P_DBG+1}")

def divmod_const(a, q, r, x, d, maxx):
    m = (65536 + d - 1) // d
    assert all((v * m) >> 16 == v // d for v in range(maxx + 1))
    a(f"v_mul_u32_u24 v{q}, {m}, v{x}")
    a(f"v_lshrrev_b32 v{q}, 16, v{q}")
    if r is not None:
        a(f"v_mul_u32_u24 v{r}, {d}, v{q}")
        a(f"v_sub_u32 v{r}, v{x}, v{r}")

def interleave(main, fill, per):
    k = 0; credit = 0.0
    for m in main:
        m()
        credit += per
        while credit >= 1 and k < len(fill):
            fill[k](); k += 1; credit -= 1
    while k < len(fill):
        fill[k](); k += 1

def group_allreduce_add(a, regs, tmp):
    for swap in ("v_permlane32_swap_b32", "v_permlane16_swap_b32"):
        for i, r in enumerate(regs): a(f"v_mov_b32 v{tmp+i}, v{r}")
        for i, r in enumerate(regs): a(f"{swap} v{r}, v{tmp+i}")
        for i, r in enumerate(regs): a(f"v_add_f32 v{r}, v{r}, v{tmp+i}")
```

```python
from common import *

STG_A = 16384
BLK = 5152
STG = STG_A + 4 * BLK
L_MISC = 4 * STG
L_CS = L_MISC
L_RS = L_MISC + 1024

S_RB, S_CG, S_SEG0, S_SEG1 = 44, 45, 46, 47
S_IT, S_KA, S_KB, S_STG, S_DLT, S_MA, S_MB, S_T0, S_T1, S_T2 = 48, 49, 50, 51, 52, 53, 54, 55, 56, 57
S_ORD = 58
S_MASK = 60
S_ONE = 68
V_DA, V_DB = 2, 6
V_RA, V_RB0, V_RB4, V_RC0, V_RC4 = 11, 13, 14, 15, 16
V_ST = 18
V_CS = 22
V_AF = 28
V_CF = 44
V_BF = 64
V_AC = 144
V_T = 224

def tile_off(t):
    seg, i = divmod(t, 5)
    return (V_RB4, seg * 160) if i == 4 else (V_RB0, seg * 160 + 40 * i)

def dma_chunk(a, vm):
    ops = []
    def m0(s, add=0):
        return lambda: a(f"s_add_u32 m0, s{s}, {add}" if add else f"s_mov_b32 m0, s{s}")
    ops.append(m0(S_MA))
    for j in range(4):
        ops.append(lambda j=j: vm.issue(f"buffer_load_dwordx4 v{V_DA+j}, s[{S_X}:{S_X+3}], s{S_KA} offen offset:{1024*j} lds"))
    ops.append(m0(S_MB))
    for j in range(4):
        ops.append(lambda j=j: vm.issue(f"buffer_load_dwordx4 v{V_DB+j}, s[{S_W}:{S_W+3}], s{S_KB} offen offset:{1024*j} lds"))
    ops.append(m0(S_MB, 4096))
    ops.append(lambda: vm.issue(f"buffer_load_dwordx4 v{V_DB+4}, s[{S_W}:{S_W+3}], s{S_KB} offen lds"))
    return ops

def next_chunk_regs(a):
    a(f"s_and_b32 s{S_T0}, s{S_ORD}, 15")
    a(f"s_lshr_b64 s[{S_ORD}:{S_ORD+1}], s[{S_ORD}:{S_ORD+1}], 4")
    a(f"s_cmp_eq_u32 s{S_T0}, 15")
    a(f"s_cselect_b32 s{S_X+2}, 0, s{S_X+2}\ns_cselect_b32 s{S_W+2}, 0, s{S_W+2}\ns_cselect_b32 s{S_T0}, 0, s{S_T0}")
    a(f"s_lshl_b32 s{S_KA}, s{S_T0}, 7")
    a(f"s_mul_i32 s{S_KB}, s{S_T0}, {64*3840}")

def gemm_setup(a):
    T = V_T
    srd(a, S_W, P_WQKV, 640 * 3840)
    a(f"s_lshl_b32 s{S_T0}, s{S_RB}, 7\ns_lshl_b32 s{S_T1}, s{S_WAVE}, 5\ns_add_u32 s{S_T0}, s{S_T0}, s{S_T1}\ns_mul_i32 s{S_T0}, s{S_T0}, 1280")
    a(f"v_lshrrev_b32 v{T}, 3, v0\nv_and_b32 v{T+1}, 7, v0\nv_lshrrev_b32 v{T+2}, 4, v0")
    a(f"v_mul_u32_u24 v{T}, 1280, v{T}\nv_add_u32 v{T}, s{S_T0}, v{T}")
    for par in range(2):
        a(f"v_add_u32 v{T+3}, {2 + 4*par}, v{T+2}\nv_and_b32 v{T+3}, 7, v{T+3}\nv_xor_b32 v{T+3}, v{T+1}, v{T+3}")
        a(f"v_lshl_add_u32 v{T+3}, v{T+3}, 4, v{T}")
        for j in (par, par + 2):
            a(f"v_add_u32 v{V_DA+j}, {8*j*1280 - 1024*j}, v{T+3}")
    a(f"s_mul_i32 s{S_T0}, s{S_WAVE}, {16*3840}\ns_add_u32 s{S_T0}, s{S_T0}, s{S_SEG0}")
    a(f"s_sub_u32 s{S_T1}, s{S_SEG1}, s{S_SEG0}\ns_sub_u32 s{S_T1}, s{S_T1}, 160")
    for j in range(5):
        a(f"v_add_u32 v{T}, {64*j}, v0")
        divmod_const(a, T + 1, T + 2, T, 20, 319)
        a(f"v_mul_u32_u24 v{T+1}, 3840, v{T+1}\nv_lshl_add_u32 v{T+1}, v{T+2}, 4, v{T+1}")
        a(f"v_cmp_lt_u32 vcc, 9, v{T+2}\nv_mov_b32 v{T+3}, s{S_T1}\nv_cndmask_b32 v{T+3}, 0, v{T+3}, vcc")
        a(f"v_add3_u32 v{V_DB+j}, v{T+1}, v{T+3}, s{S_T0}")
        if 0 < j < 4: a(f"v_subrev_u32 v{V_DB+j}, {1024*j}, v{V_DB+j}")
    a(f"s_lshl_b32 s{S_MA}, s{S_WAVE}, 12\ns_mul_i32 s{S_MB}, s{S_WAVE}, {BLK}\ns_add_u32 s{S_MB}, s{S_MB}, {STG_A}")

def read_setup(a):
    T = V_T
    a(f"v_and_b32 v{T}, 15, v0\nv_lshrrev_b32 v{T+1}, 4, v0")
    a(f"v_and_b32 v{T+2}, 1, v{T+1}\nv_lshrrev_b32 v{T+3}, 1, v{T+1}\nv_lshl_or_b32 v{T+4}, v{T+2}, 1, v{T+3}")
    a(f"v_lshrrev_b32 v{T+5}, 1, v{T}\nv_add_u32 v{T+5}, 2, v{T+5}\nv_and_b32 v{T+5}, 7, v{T+5}\nv_xor_b32 v{T+5}, v{T+4}, v{T+5}")
    a(f"v_lshlrev_b32 v{T+5}, 4, v{T+5}\nv_lshl_add_u32 v{T+5}, v{T}, 7, v{T+5}")
    a(f"s_lshl_b32 s{S_T0}, s{S_WAVE}, 12\nv_add_u32 v{V_RA}, s{S_T0}, v{T+5}\nv_xor_b32 v{V_RA+1}, 64, v{V_RA}")
    a(f"v_bfe_u32 v{T+5}, v0, 2, 2\nv_lshl_add_u32 v{T+5}, v{T+3}, 3, v{T+5}\nv_mul_u32_u24 v{T+5}, 320, v{T+5}")
    a(f"v_mul_u32_u24 v{T+6}, {BLK}, v{T+2}\nv_add_u32 v{T+5}, v{T+5}, v{T+6}\nv_add_u32 v{T+5}, {STG_A}, v{T+5}")
    a(f"v_and_b32 v{T+6}, 3, v0\nv_lshl_add_u32 v{V_RB0}, v{T+6}, 3, v{T+5}")
    a(f"v_mul_u32_u24 v{T+6}, 40, v{T+6}\nv_add3_u32 v{V_RB4}, v{T+5}, v{T+6}, 32")
    a(f"s_lshr_b32 s{S_T0}, s{S_WAVE}, 1\ns_mul_i32 s{S_T0}, s{S_T0}, 160\ns_and_b32 s{S_T1}, s{S_WAVE}, 1\ns_mul_i32 s{S_T1}, s{S_T1}, {2*BLK}\ns_add_u32 s{S_T0}, s{S_T0}, s{S_T1}")
    a(f"v_add_u32 v{V_RC0}, s{S_T0}, v{V_RB0}\nv_add_u32 v{V_RC4}, s{S_T0}, v{V_RB4}")
    for r in list(range(V_ST, V_ST + 9)) + list(range(V_AC, V_AC + 80)):
        a(f"v_mov_b32 v{r}, 0")
    a(f"s_mov_b32 s{S_ONE}, {ONES2}")
    a(f"v_lshlrev_b32 v{T}, 4, v0\nv_add_u32 v{T}, {L_CS}, v{T}")
    a(f"ds_write_b128 v{T}, v[{V_AC}:{V_AC+3}]")

def main_loop(a, transposed):
    vm = Counter(a, "vmcnt", 63); lg = Counter(a, "lgkmcnt", 15)
    loop = a.uid("p1loop")
    a(f"s_mov_b32 s{S_IT}, 10\ns_mov_b32 s{S_STG}, 0")
    a(f"{loop}:")
    next_chunk_regs(a)
    a("s_waitcnt vmcnt(18) lgkmcnt(0)")
    a("s_barrier")
    def rdA(ks, rt):
        d = V_AF + (ks * 2 + rt) * 4
        return lambda: lg.issue(f"ds_read_b128 v[{d}:{d+3}], v{V_RA+ks} offset:{2048*rt}", ("A", ks, rt))
    def rdB(ks, t, hh):
        d = V_BF + (ks * 10 + t) * 4 + 2 * hh
        reg, off = tile_off(t)
        return lambda: lg.issue(f"ds_read_b64_tr_b16 v[{d}:{d+1}], v{reg} offset:{off + ks*2*BLK + hh*1280}", ("B", ks, t, hh))
    def rdC(i, hh):
        d = V_CF + i * 4 + 2 * hh
        reg, off = (V_RC4, 0) if i == 4 else (V_RC0, 40 * i)
        return lambda: lg.issue(f"ds_read_b64_tr_b16 v[{d}:{d+1}], v{reg} offset:{off + hh*1280}", ("C", i, hh))
    def mf(ks, t, rt):
        def f():
            lg.wait(("A", ks, rt), ("B", ks, t, 1))
            A = vr(V_AF + (ks * 2 + rt) * 4, 4); B = vr(V_BF + (ks * 10 + t) * 4, 4); C = vr(V_AC + (rt * 10 + t) * 4, 4)
            a(f"{MF} {C}, {B}, {A}, {C}" if transposed else f"{MF} {C}, {A}, {B}, {C}")
        return f
    for rt in range(2): rdA(0, rt)()
    for t in range(3):
        for hh in range(2): rdB(0, t, hh)()
    dma = dma_chunk(a, vm)
    fill = [rdB(0, t, hh) for t in range(3, 10) for hh in range(2)]
    fill += [rdA(1, 0), rdA(1, 1)] + [rdB(1, t, hh) for t in range(10) for hh in range(2)]
    fill += [rdC(i, hh) for i in range(5) for hh in range(2)]
    mixed = []
    for i, f in enumerate(fill):
        mixed.append(f)
        if i % 3 == 2 and dma: mixed.append(dma.pop(0))
    mixed += dma
    interleave([mf(ks, t, rt) for ks in range(2) for t in range(10) for rt in range(2)], mixed, 1.7)
    a(f"s_add_u32 s{S_STG}, s{S_STG}, 1\ns_and_b32 s{S_STG}, s{S_STG}, 3")
    a(f"s_cmp_eq_u32 s{S_STG}, 0\ns_cselect_b32 s{S_DLT}, s{S_T1}, s{S_T2}")
    for r in (V_RA, V_RA + 1, V_RB0, V_RB4, V_RC0, V_RC4):
        a(f"v_add_u32 v{r}, s{S_DLT}, v{r}")
    a(f"s_cmp_eq_u32 s{S_STG}, 1\ns_cselect_b32 s{S_DLT}, s{S_T1}, s{S_T2}")
    a(f"s_add_u32 s{S_MA}, s{S_MA}, s{S_DLT}\ns_add_u32 s{S_MB}, s{S_MB}, s{S_DLT}")
    for ks in range(2):
        for q in range(4):
            for rt in range(2):
                r = V_AF + (ks * 2 + rt) * 4 + q
                a(f"v_dot2c_f32_bf16 v{V_ST+2*rt}, s{S_ONE}, v{r}")
                a(f"v_dot2c_f32_bf16 v{V_ST+2*rt+1}, v{r}, v{r}")
    lg.drain()
    for q in range(4):
        for i in range(5):
            a(f"v_dot2c_f32_bf16 v{V_CS+i}, s{S_ONE}, v{V_CF+4*i+q}")
    a(f"s_sub_u32 s{S_IT}, s{S_IT}, 1\ns_cmp_lg_u32 s{S_IT}, 0\ns_cbranch_scc1 {loop}")

def finish_stats(a):
    T = V_T
    a(f"s_lshr_b32 s{S_T0}, s{S_WAVE}, 1\ns_mul_i32 s{S_T0}, s{S_T0}, 320\ns_add_u32 s{S_T0}, s{S_T0}, {L_CS}")
    a(f"v_and_b32 v{T}, 15, v0\nv_lshl_add_u32 v{T}, v{T}, 2, s{S_T0}")
    for i in range(5):
        a(f"ds_add_f32 v{T}, v{V_CS+i} offset:{64*i}")
    group_allreduce_add(a, [V_ST + i for i in range(4)], T + 1)
    M, R, RL = V_CF, V_CF + 2, V_CF + 4
    for rt in range(2):
        a(f"v_mul_f32 v{M+rt}, {INV640}, v{V_ST+2*rt}")
        a(f"v_mul_f32 v{T+1}, {INV640}, v{V_ST+2*rt+1}")
        a(f"v_fma_f32 v{T+1}, -v{M+rt}, v{M+rt}, v{T+1}")
        a(f"v_max_f32 v{T+1}, 0, v{T+1}\nv_add_f32 v{T+1}, {EPS5}, v{T+1}")
        a(f"v_rsq_f32 v{R+rt}, v{T+1}")
        a(f"v_mul_f32 v{RL+rt}, {LOG2E}, v{R+rt}")
    return M, R, RL

def pk(op, d, *srcs, neg0=False):
    txt, lo, hi = [], [], []
    for s in srcs:
        if isinstance(s, tuple):
            r = s[1]; e = r & ~1
            txt.append(f"v[{e}:{e+1}]"); lo.append(r & 1); hi.append(r & 1)
        elif isinstance(s, str):
            txt.append(s); lo.append(0); hi.append(0)
        else:
            txt.append(f"v[{s}:{s+1}]"); lo.append(0); hi.append(1)
    f = lambda x: "[" + ",".join(map(str, x)) + "]"
    m = f" op_sel:{f(lo)} op_sel_hi:{f(hi)}"
    if neg0:
        n = [1] + [0] * (len(srcs) - 1)
        m += f" neg_lo:{f(n)} neg_hi:{f(n)}"
    return f"{op} v[{d}:{d+1}], " + ", ".join(txt) + m

def phi4(a, acc, mean, cs, rstd, rstdl, tmp, seps):
    for h in range(2): a(pk("v_pk_fma_f32", acc + 2*h, mean(h), cs(h), acc + 2*h, neg0=True))
    for h in range(2): a(pk("v_pk_mul_f32", tmp + 2*h, acc + 2*h, rstdl(h)))
    for r in range(4): a(f"v_exp_f32_e64 v{tmp+r}, v{tmp+r} clamp")
    for r in range(4): a(f"v_max_f32 v{acc+r}, 0, v{acc+r}")
    for h in range(2): a(pk("v_pk_add_f32", tmp + 2*h, tmp + 2*h, f"s[{seps}:{seps+1}]"))
    for h in range(2): a(pk("v_pk_fma_f32", acc + 2*h, acc + 2*h, rstd(h), tmp + 2*h))

def epilogue_q(a):
    T = V_T
    M, R, RL = finish_stats(a)
    a("s_waitcnt lgkmcnt(0)\ns_barrier")
    CS = V_BF
    a(f"v_lshrrev_b32 v{T}, 4, v0\nv_lshlrev_b32 v{T}, 4, v{T}\nv_add_u32 v{T}, {L_CS}, v{T}")
    for t in range(10):
        a(f"ds_read_b128 v[{CS+4*t}:{CS+4*t+3}], v{T} offset:{64*t}")
    a(f"s_mov_b32 s{S_MASK}, {EPS6}\ns_mov_b32 s{S_MASK+1}, {EPS6}")
    a(f"s_lshl_b32 s{S_T0}, s{S_RB}, 3\ns_lshl_b32 s{S_T1}, s{S_WAVE}, 1\ns_add_u32 s{S_T0}, s{S_T0}, s{S_T1}\ns_lshl_b32 s{S_T0}, s{S_T0}, 2")
    a(f"s_add_u32 s{S_T0}, s{S_T0}, s{S_CG}\ns_sub_u32 s{S_T0}, s{S_T0}, 8\ns_mul_i32 s{S_T0}, s{S_T0}, 5120\ns_add_u32 s{S_T0}, s{S_T0}, {PQ}")
    a(f"v_lshlrev_b32 v{T}, 4, v0")
    a("s_waitcnt lgkmcnt(0)")
    units = [(0, 4), (1, 2), (3, 5), (6, 7), (9, 8)]
    OUT = V_BF + 40
    for rt in range(2):
        for u, pair in enumerate(units):
            o = OUT + (rt * 5 + u) * 4
            for k, t in enumerate(pair):
                acc = V_AC + (rt * 10 + t) * 4
                phi4(a, acc, lambda h: ("b", M + rt), lambda h: CS + 4*t + 2*h, lambda h: ("b", R + rt), lambda h: ("b", RL + rt), T + 2, S_MASK)
                a(f"v_cvt_pk_bf16_f32 v{o+2*k}, v{acc}, v{acc+1}\nv_cvt_pk_bf16_f32 v{o+2*k+1}, v{acc+2}, v{acc+3}")
            if u == 4: a(f"s_add_u32 s{S_T1}, s{S_T0}, 4096")
            a(f"buffer_store_dwordx4 v[{o}:{o+3}], v{T}, s[{S_WS}:{S_WS+3}], s{S_T1 if u == 4 else S_T0} offen offset:{1024*(u&3)} sc1")
        if rt == 0: a(f"s_add_u32 s{S_T0}, s{S_T0}, {4*5120}")

def epilogue_kv(a):
    T = V_T
    M, R, RL = finish_stats(a)
    a(f"s_mul_i32 s{S_T0}, s{S_WAVE}, 384\ns_add_u32 s{S_T0}, s{S_T0}, {L_RS}")
    a(f"v_and_b32 v{T}, 15, v0\nv_lshl_add_u32 v{T+1}, v{T}, 2, s{S_T0}")
    for q, base in enumerate((M, R, RL)):
        for rt in range(2):
            a(f"ds_write_b32 v{T+1}, v{base+rt} offset:{128*q + 64*rt}")
    a(f"v_lshrrev_b32 v{T+2}, 4, v0\nv_lshl_add_u32 v{T+3}, v{T+2}, 4, s{S_T0}")
    a(f"v_lshlrev_b32 v{T+1}, 2, v{T}\nv_add_u32 v{T+1}, {L_CS}, v{T+1}")
    a("s_waitcnt lgkmcnt(0)\ns_barrier")
    RS = V_BF
    CS = V_BF + 24
    for q in range(3):
        for rt in range(2):
            a(f"ds_read_b128 v[{RS+8*q+4*rt}:{RS+8*q+4*rt+3}], v{T+3} offset:{128*q + 64*rt}")
    for t in range(10):
        a(f"ds_read_b32 v{CS+t}, v{T+1} offset:{64*t}")
    for i in range(4):
        m = 0x000F000F << (4 * i)
        a(f"s_mov_b32 s{S_MASK+2*i}, {m}\ns_mov_b32 s{S_MASK+2*i+1}, {m}")
    SE = S_KA + 1 if S_KA & 1 else S_KA
    a(f"s_mov_b32 s{SE}, {EPS6}\ns_mov_b32 s{SE+1}, {EPS6}")
    AL, AB0, AB1, AB4 = V_DA, V_DA + 1, V_DA + 2, V_DA + 3
    a(f"s_lshl_b32 s{S_T0}, s{S_WAVE}, 13")
    a(f"v_lshl_add_u32 v{AL}, v0, 4, s{S_T0}")
    a(f"v_and_b32 v{T+4}, 3, v0\nv_bfe_u32 v{T+5}, v0, 2, 1\nv_lshlrev_b32 v{T+4}, 2, v{T+4}\nv_lshl_add_u32 v{T+4}, v{T+5}, 1, v{T+4}")
    a(f"v_lshl_add_u32 v{T+4}, v{T+2}, 4, v{T+4}\nv_bfe_u32 v{T+5}, v0, 3, 1")
    a(f"v_add_u32 v{AB0}, v{T+4}, v{T+5}\nv_xor_b32 v{AB1}, 1, v{AB0}")
    a(f"v_lshrrev_b32 v{T+5}, 5, v0\nv_xor_b32 v{AB4}, v{T+5}, v{AB0}")
    for r in (AB0, AB1, AB4): a(f"v_lshl_add_u32 v{r}, v{r}, 4, s{S_T0}")
    CON = V_DB
    a(f"v_mov_b32 v{T+4}, {ONES2}")
    for i in range(4):
        a(f"v_cndmask_b32 v{CON+i}, 0, v{T+4}, s[{S_MASK+2*(i^2)}:{S_MASK+2*(i^2)+1}]")
    a("s_waitcnt lgkmcnt(0)")
    OP = V_BF + 40
    for t in range(10):
        for rt in range(2):
            acc = V_AC + (rt * 10 + t) * 4
            mean = lambda h: RS + 4*rt + 2*h; rstd = lambda h: RS + 8 + 4*rt + 2*h; rstdl = lambda h: RS + 16 + 4*rt + 2*h
            if t < 5:
                phi4(a, acc, mean, lambda h: ("b", CS + t), rstd, rstdl, T + 4, SE)
            else:
                for h in range(2): a(pk("v_pk_fma_f32", acc + 2*h, mean(h), ("b", CS + t), acc + 2*h, neg0=True))
                for h in range(2): a(pk("v_pk_mul_f32", acc + 2*h, acc + 2*h, rstd(h)))
            o = OP + 4*t + 2*rt
            a(f"v_cvt_pk_bf16_f32 v{o}, v{acc}, v{acc+1}\nv_cvt_pk_bf16_f32 v{o+1}, v{acc+2}, v{acc+3}")
    K = lambda i: OP + 4*i; V = lambda i: OP + 20 + 4*i
    KM, BI, D = V_AC, V_AC + 16, V_AC + 32
    for i in range(4):
        for q in range(4):
            a(f"v_cndmask_b32 v{KM+4*i+q}, 0, v{K(4)+q}, s[{S_MASK+2*i}:{S_MASK+2*i+1}]")
            a(f"v_cndmask_b32 v{BI+4*i+q}, v{CON+i}, v{V(4)+q}, s[{S_MASK+2*i}:{S_MASK+2*i+1}]")
    for i in range(4):
        a(f"{MF} {vr(D+4*i,4)}, {vr(K(i),4)}, {vr(V(i),4)}, 0")
    for i in range(4):
        a(f"{MF} {vr(D+16,4)}, {vr(KM+4*i,4)}, {vr(V(i),4)}, {vr(D+16,4) if i else 0}")
        a(f"{MF} {vr(D+20+4*(i>>1),4)}, {vr(K(i),4)}, {vr(BI+4*i,4)}, {vr(D+20+4*(i>>1),4) if i&1 else 0}")
        a(f"{MF} {vr(D+28,4)}, {vr(KM+4*i,4)}, {vr(BI+4*i,4)}, {vr(D+28,4) if i else 0}")
    a("s_waitcnt vmcnt(0)")
    a("s_barrier")
    for f in range(8):
        ad = AL if f < 5 else (AB0, AB1, AB4)[f - 5]
        a(f"ds_write_b128 v{ad}, {vr(D+4*f,4)} offset:{1024*f}")
    a(f"s_lshl_b32 s{S_T0}, s{S_WAVE}, 11\nv_lshl_add_u32 v{T}, v0, 2, s{S_T0}")
    a("s_waitcnt lgkmcnt(0)\ns_barrier")
    SUM = V_BF
    for m in range(8):
        a(f"ds_read2st64_b32 v[{SUM+4*m}:{SUM+4*m+1}], v{T} offset0:{m} offset1:{32+m}")
        a(f"ds_read2st64_b32 v[{SUM+4*m+2}:{SUM+4*m+3}], v{T} offset0:{64+m} offset1:{96+m}")
    wait_init(a)
    a(f"s_lshl_b32 s{S_T0}, s{S_CG}, 13\ns_add_u32 s{S_T0}, s{S_T0}, {KVACC}")
    a("s_waitcnt lgkmcnt(0)")
    for m in range(8):
        a(pk("v_pk_add_f32", SUM + 4*m, SUM + 4*m, SUM + 4*m + 2))
        a(f"v_add_f32 v{SUM+4*m}, v{SUM+4*m}, v{SUM+4*m+1}")
        a(f"buffer_atomic_add_f32 v{SUM+4*m}, v{T}, s[{S_WS}:{S_WS+3}], s{S_T0} offen offset:{256*m}")

def wait_init(a):
    T = V_T
    spin = a.uid("init")
    out = a.uid("initx")
    a(f"v_mov_b32 v{T+8}, 0\ns_mov_b32 s{S_IT}, 0x40000")
    a(f"{spin}:")
    a(f"s_sub_u32 s{S_IT}, s{S_IT}, 1\ns_cbranch_scc1 {out}")
    a(f"global_load_dword v{T+9}, v{T+8}, s[{S_DBG}:{S_DBG+1}] sc1")
    a("s_waitcnt vmcnt(0)")
    a(f"v_readfirstlane_b32 s{S_T1}, v{T+9}")
    a(f"s_cmp_lt_u32 s{S_T1}, 8\ns_cbranch_scc1 {spin}")
    a(f"{out}:")

def helper(a, done):
    T = V_T
    HID = S_CG
    l13, l2, lo, lw = a.uid("h13"), a.uid("h2"), a.uid("ho"), a.uid("hw")
    G, R, C = 20, 21, 22
    a(f"v_lshrrev_b32 v{G}, 4, v0\nv_bfe_u32 v{R}, v0, 2, 2\nv_and_b32 v{C}, 3, v0")
    a(f"s_cmp_ge_u32 s{HID}, 48\ns_cbranch_scc1 {l2}")
    a(f"s_cmp_ge_u32 s{HID}, 8\ns_cbranch_scc1 {l13}")
    for r in range(4): a(f"v_mov_b32 v{T+r}, 0")
    a(f"s_lshl_b32 s{S_T0}, s{HID}, 13\ns_lshl_b32 s{S_T1}, s{S_WAVE}, 11\ns_add_u32 s{S_T0}, s{S_T0}, s{S_T1}\ns_add_u32 s{S_T0}, s{S_T0}, {KVACC}")
    a(f"v_lshlrev_b32 v{T+4}, 4, v0")
    for j in range(2): a(f"buffer_store_dwordx4 v[{T}:{T+3}], v{T+4}, s[{S_WS}:{S_WS+3}], s{S_T0} offen offset:{1024*j} sc1")
    a("s_waitcnt vmcnt(0)\ns_barrier")
    skip = a.uid("nz")
    a(f"s_cmp_lg_u32 s{S_WAVE}, 0\ns_cbranch_scc1 {skip}")
    a(f"v_mov_b32 v{T+5}, 1\ns_mov_b64 exec, 1")
    a(f"global_atomic_add v{T}, v{T+5}, s[{S_DBG}:{S_DBG+1}] sc1")
    a("s_mov_b64 exec, -1")
    a(f"{skip}:")
    srd(a, S_W, P_WO, 640 * 1280)
    a(f"s_lshr_b32 s{S_RB}, s{HID}, 1\ns_mul_i32 s{S_KB}, s{S_RB}, {160*1280}\ns_mov_b32 s{S_IT}, 5")
    a(f"s_branch {lw}")
    a(f"{l2}:")
    srd(a, S_W, P_W2, 1536 * 1280)
    a(f"s_sub_u32 s{S_RB}, s{HID}, 48\ns_lshr_b32 s{S_RB}, s{S_RB}, 1\ns_mul_i32 s{S_KB}, s{S_RB}, {192*1280}\ns_mov_b32 s{S_IT}, 6")
    a(f"{lw}:")
    a(f"s_and_b32 s{S_SEG0}, s{HID}, 1\ns_mul_i32 s{S_T0}, s{S_SEG0}, 640\ns_add_u32 s{S_KB}, s{S_KB}, s{S_T0}")
    a(f"s_mul_i32 s{S_T0}, s{S_WAVE}, {8*1280}\ns_add_u32 s{S_KB}, s{S_KB}, s{S_T0}\ns_mul_i32 s{S_MB}, s{S_WAVE}, 5120")
    for j in range(5):
        a(f"v_add_u32 v{T}, {64*j}, v0")
        divmod_const(a, T + 1, T + 2, T, 40, 319)
        a(f"v_mul_u32_u24 v{T+1}, 1280, v{T+1}\nv_lshl_add_u32 v{V_DB+j}, v{T+2}, 4, v{T+1}")
        if 0 < j < 4: a(f"v_subrev_u32 v{V_DB+j}, {1024*j}, v{V_DB+j}")
    ld = a.uid("hld")
    a(f"{ld}:")
    a(f"s_mov_b32 m0, s{S_MB}")
    for j in range(4): a(f"buffer_load_dwordx4 v{V_DB+j}, s[{S_W}:{S_W+3}], s{S_KB} offen offset:{1024*j} lds")
    a(f"s_add_u32 m0, s{S_MB}, 4096")
    a(f"buffer_load_dwordx4 v{V_DB+4}, s[{S_W}:{S_W+3}], s{S_KB} offen lds")
    a(f"s_add_u32 s{S_KB}, s{S_KB}, {32*1280}\ns_add_u32 s{S_MB}, s{S_MB}, {4*5120}")
    a(f"s_sub_u32 s{S_IT}, s{S_IT}, 1\ns_cmp_lg_u32 s{S_IT}, 0\ns_cbranch_scc1 {ld}")
    CA, CB, OA = 23, 24, 25
    a(f"s_mul_i32 s{S_T0}, s{S_WAVE}, 160")
    a(f"v_lshl_add_u32 v{CA}, v{C}, 4, s{S_T0}")
    a(f"v_and_b32 v{T}, 1, v{C}\nv_lshrrev_b32 v{T+1}, 1, v{C}\nv_lshlrev_b32 v{T}, 4, v{T}\nv_lshl_add_u32 v{T}, v{T+1}, 3, v{T}")
    a(f"v_add_u32 v{T}, 128, v{T}\nv_add_u32 v{CB}, s{S_T0}, v{T}")
    a(f"v_lshlrev_b32 v{OA}, 4, v0")
    a(f"s_lshl_b32 s{S_SEG1}, s{S_SEG0}, 2\ns_add_u32 s{S_SEG1}, s{S_SEG1}, s{S_WAVE}")
    a(f"s_cmp_lt_u32 s{HID}, 8\ns_cbranch_scc1 {lo}")
    def emit_frags(frags, sbase):
        lg = Counter(a, "lgkmcnt", 15)
        F = 64
        n = len(frags)
        def rd(i):
            reg, o0, o1 = frags[i]; d = F + 4 * i
            lg.issue(f"ds_read_b64_tr_b16 v[{d}:{d+1}], v{reg} offset:{o0}")
            lg.issue(f"ds_read_b64_tr_b16 v[{d+2}:{d+3}], v{reg} offset:{o1}", i)
        for i in range(min(6, n)): rd(i)
        for i in range(n):
            if i + 6 < n: rd(i + 6)
            lg.wait(lg.tags[i])
            off = sbase(i)
            a(f"buffer_store_dwordx4 v[{F+4*i}:{F+4*i+3}], v{OA}, s[{S_WS}:{S_WS+3}], s{S_T0} offen offset:{off} sc1")
    def linear(i):
        if i and i % 4 == 0: a(f"s_add_u32 s{S_T0}, s{S_T0}, 4096")
        return 1024 * (i % 4)
    ctoff = lambda ct: 0 if ct == 4 else 64 * (ct >> 1) + 8 * (ct & 1)
    a(f"v_lshl_add_u32 v{T}, v{G}, 3, v{R}\nv_mul_u32_u24 v{T}, 640, v{T}")
    for k in range(2):
        a(f"v_add_u32 v{26+2*k}, v{T}, v{CA}\nv_add_u32 v{27+2*k}, v{T}, v{CB}")
        if k == 0: a(f"v_add_u32 v{T}, {96*640}, v{T}")
    a(f"s_mul_i32 s{S_T0}, s{S_SEG1}, 48\ns_mul_i32 s{S_T1}, s{S_RB}, 6\ns_add_u32 s{S_T0}, s{S_T0}, s{S_T1}\ns_mul_i32 s{S_T0}, s{S_T0}, 5120\ns_add_u32 s{S_T0}, s{S_T0}, {W2S}")
    a("s_waitcnt vmcnt(0)\ns_barrier")
    emit_frags([(26 + 2 * (ks // 3) + (ct == 4), (ks % 3) * 32 * 640 + ctoff(ct), (ks % 3) * 32 * 640 + 4 * 640 + ctoff(ct)) for ks in range(6) for ct in range(5)], linear)
    a(f"s_branch {done}")
    a(f"{lo}:")
    a(f"v_lshl_add_u32 v{T}, v{G}, 2, v{R}\nv_mul_u32_u24 v{T}, 640, v{T}")
    for k in range(2):
        a(f"v_add_u32 v{26+2*k}, v{T}, v{CA}\nv_add_u32 v{27+2*k}, v{T}, v{CB}")
        if k == 0: a(f"v_add_u32 v{T}, {80*640}, v{T}")
    a(f"v_mul_u32_u24 v{T}, 20, v{R}\nv_add3_u32 v{T}, v{T}, v{G}, 16\nv_mul_u32_u24 v{T}, 640, v{T}")
    a(f"v_add_u32 v30, v{T}, v{CA}\nv_add_u32 v31, v{T}, v{CB}")
    a(f"s_lshl_b32 s{S_T0}, s{S_SEG1}, 2\ns_add_u32 s{S_T0}, s{S_T0}, s{S_RB}\ns_mul_i32 s{S_T0}, s{S_T0}, 25600\ns_add_u32 s{S_T0}, s{S_T0}, {WOS}")
    a("s_waitcnt vmcnt(0)\ns_barrier")
    fr = [(26 + 2 * (ks // 2) + (ct == 4), (ks % 2) * 40 * 640 + ctoff(ct), (ks % 2) * 40 * 640 + 20 * 640 + ctoff(ct)) for ks in range(4) for ct in range(5)]
    fr += [(30 + (ct == 4), ctoff(ct), 80 * 640 + ctoff(ct)) for ct in range(5)]
    emit_frags(fr, linear)
    a(f"s_branch {done}")
    a(f"{l13}:")
    a(f"s_cmp_ge_u32 s{S_WAVE}, 2\ns_cselect_b32 s{S_W}, s{P_W3}, s{P_W1}\ns_cselect_b32 s{S_W+1}, s{P_W3+1}, s{P_W1+1}")
    a(f"s_mov_b32 s{S_W+2}, {640*3072}\ns_mov_b32 s{S_W+3}, 0x20000")
    a(f"s_sub_u32 s{S_T0}, s{HID}, 8\ns_and_b32 s{S_SEG0}, s{S_T0}, 7\ns_lshr_b32 s{S_RB}, s{S_T0}, 3")
    a(f"s_mul_i32 s{S_KB}, s{S_RB}, {128*3072}\ns_mul_i32 s{S_T0}, s{S_SEG0}, 384\ns_add_u32 s{S_KB}, s{S_KB}, s{S_T0}")
    a(f"s_and_b32 s{S_T0}, s{S_WAVE}, 1\ns_mul_i32 s{S_T0}, s{S_T0}, {64*3072}\ns_add_u32 s{S_KB}, s{S_KB}, s{S_T0}")
    a(f"s_mul_i32 s{S_MB}, s{S_WAVE}, 24576\ns_mov_b32 s{S_IT}, 8")
    for j in range(3):
        a(f"v_add_u32 v{T}, {64*j}, v0")
        divmod_const(a, T + 1, T + 2, T, 24, 191)
        a(f"v_mul_u32_u24 v{T+1}, 3072, v{T+1}\nv_lshl_add_u32 v{V_DB+j}, v{T+2}, 4, v{T+1}")
        if j: a(f"v_subrev_u32 v{V_DB+j}, {1024*j}, v{V_DB+j}")
    ld = a.uid("hld")
    a(f"{ld}:")
    a(f"s_mov_b32 m0, s{S_MB}")
    for j in range(3): a(f"buffer_load_dwordx4 v{V_DB+j}, s[{S_W}:{S_W+3}], s{S_KB} offen offset:{1024*j} lds")
    a(f"s_add_u32 s{S_KB}, s{S_KB}, {8*3072}\ns_add_u32 s{S_MB}, s{S_MB}, 3072")
    a(f"s_sub_u32 s{S_IT}, s{S_IT}, 1\ns_cmp_lg_u32 s{S_IT}, 0\ns_cbranch_scc1 {ld}")
    a(f"v_lshl_add_u32 v{T}, v{G}, 3, v{R}\ns_lshl_b32 s{S_T0}, s{S_WAVE}, 5\nv_add_u32 v{T}, s{S_T0}, v{T}\nv_mul_u32_u24 v{T}, 384, v{T}")
    a(f"v_lshrrev_b32 v{T+1}, 1, v{C}\nv_mul_u32_u24 v{T+1}, 49152, v{T+1}\nv_and_b32 v{T+2}, 1, v{C}\nv_lshlrev_b32 v{T+2}, 3, v{T+2}")
    a(f"v_add3_u32 v26, v{T}, v{T+1}, v{T+2}")
    a(f"v_bfe_u32 v{T}, v0, 1, 2\nv_bfe_u32 v{T+1}, v0, 3, 1\nv_and_b32 v{T+2}, 1, v0")
    a(f"v_lshlrev_b32 v{T}, 2, v{T}\nv_lshl_add_u32 v{T}, v{T+1}, 1, v{T}\nv_add_u32 v{T}, v{T}, v{T+2}")
    a(f"v_lshl_add_u32 v{T}, v{G}, 4, v{T}\nv_lshlrev_b32 v{OA}, 4, v{T}")
    a(f"s_mul_i32 s{S_T0}, s{S_SEG0}, 160\ns_lshl_b32 s{S_T1}, s{S_RB}, 2\ns_add_u32 s{S_T0}, s{S_T0}, s{S_T1}\ns_add_u32 s{S_T0}, s{S_T0}, s{S_WAVE}")
    a(f"s_mul_i32 s{S_T0}, s{S_T0}, 3072\ns_add_u32 s{S_T0}, s{S_T0}, {W13S}")
    a("s_waitcnt vmcnt(0)\ns_barrier")
    def out13(i):
        if i and i % 3 == 0: a(f"s_add_u32 s{S_T0}, s{S_T0}, {20*3072}")
        return 1024 * (i % 3)
    emit_frags([(26, 16 * t, 16 * t + 1536) for t in range(24)], out13)
    a(f"s_branch {done}")

def order_word(lead):
    o = list(range(10))
    for w in range(1, 10):
        if w % 4 == lead: o[w - 1], o[w] = o[w], o[w - 1]
    o += [15, 15, 15]
    return sum(c << (4 * i) for i, c in enumerate(o))

def phase1(a, done, lead=True):
    lq, lh, lg_, lqq = a.uid("roleq"), a.uid("roleh"), a.uid("gemm"), a.uid("gq")
    a(f"s_and_b32 s{S_T0}, s2, 7\ns_lshr_b32 s{S_T1}, s2, 3")
    a(f"s_cmp_ge_u32 s{S_T1}, 24\ns_cbranch_scc1 {lh}")
    a(f"s_lshr_b32 s{S_RB}, s{S_T0}, 1\ns_lshl_b32 s{S_RB}, s{S_RB}, 2\ns_and_b32 s{S_T2}, s{S_T1}, 3\ns_add_u32 s{S_RB}, s{S_RB}, s{S_T2}")
    a(f"s_and_b32 s{S_T0}, s{S_T0}, 1\ns_lshr_b32 s{S_T1}, s{S_T1}, 2")
    a(f"s_add_u32 s{S_DLT}, s{S_T1}, s{S_T2}\ns_and_b32 s{S_DLT}, s{S_DLT}, 3")
    a(f"s_cmp_ge_u32 s{S_T1}, 4\ns_cbranch_scc1 {lq}")
    a(f"s_lshl_b32 s{S_CG}, s{S_T0}, 2\ns_add_u32 s{S_CG}, s{S_CG}, s{S_T1}")
    a(f"s_mul_i32 s{S_SEG0}, s{S_CG}, 160\ns_add_u32 s{S_SEG0}, s{S_SEG0}, 1280\ns_add_u32 s{S_SEG1}, s{S_SEG0}, 1280")
    a(f"s_branch {lg_}")
    a(f"{lq}:")
    a(f"s_lshl_b32 s{S_CG}, s{S_T0}, 1\ns_add_u32 s{S_CG}, s{S_CG}, s{S_T1}\ns_add_u32 s{S_CG}, s{S_CG}, 4")
    a(f"s_sub_u32 s{S_SEG0}, s{S_CG}, 8\ns_mul_i32 s{S_SEG0}, s{S_SEG0}, 320\ns_add_u32 s{S_SEG1}, s{S_SEG0}, 160")
    a(f"{lg_}:")
    for c in range(4):
        w = order_word(c if lead else 9)
        if c == 0:
            a(f"s_mov_b32 s{S_ORD}, {w & 0xffffffff}\ns_mov_b32 s{S_ORD+1}, {w >> 32}")
        else:
            a(f"s_cmp_eq_u32 s{S_DLT}, {c}\ns_cselect_b32 s{S_ORD}, {w & 0xffffffff}, s{S_ORD}\ns_cselect_b32 s{S_ORD+1}, {w >> 32}, s{S_ORD+1}")
    gemm_setup(a)
    vm = Counter(a, "vmcnt", 63)
    for c in range(3):
        next_chunk_regs(a)
        for f in dma_chunk(a, vm): f()
        a(f"s_add_u32 s{S_MA}, s{S_MA}, {STG}\ns_add_u32 s{S_MB}, s{S_MB}, {STG}")
    read_setup(a)
    a(f"s_mov_b32 s{S_T1}, {(-3*STG) & 0xffffffff}\ns_mov_b32 s{S_T2}, {STG}")
    a(f"s_cmp_ge_u32 s{S_CG}, 8\ns_cbranch_scc1 {lqq}")
    main_loop(a, False)
    epilogue_kv(a)
    a(f"s_branch {done}")
    a(f"{lqq}:")
    main_loop(a, True)
    epilogue_q(a)
    a(f"s_branch {done}")
    a(f"{lh}:")
    a(f"s_sub_u32 s{S_T1}, s{S_T1}, 24\ns_lshl_b32 s{S_T1}, s{S_T1}, 3\ns_add_u32 s{S_CG}, s{S_T1}, s{S_T0}")
    helper(a, done)
```

```python
from common import *
from p1 import pk

S_GRP, S_MEM, S_RH, S_CB = 44, 45, 46, 47
S_T0, S_T1, S_T2, S_T3 = 48, 49, 50, 51
S_RT = 52
S_LW = 56
S_MASK = 60
S_C = 72
V_L16 = 1
V_HRES = 2
V_HA = 12
L_RED = 102400

def ids(a, mapping="R8"):
    a(f"s_and_b32 s{S_T0}, s2, 7\ns_lshr_b32 s{S_T1}, s2, 3")
    if mapping == "R8":
        a(f"s_lshl_b32 s{S_GRP}, s{S_T0}, 1\ns_and_b32 s{S_T2}, s{S_T1}, 1\ns_add_u32 s{S_GRP}, s{S_GRP}, s{S_T2}\ns_lshr_b32 s{S_MEM}, s{S_T1}, 1")
    else:
        a(f"s_lshr_b32 s{S_GRP}, s{S_T0}, 1\ns_lshl_b32 s{S_GRP}, s{S_GRP}, 2\ns_and_b32 s{S_T2}, s{S_T1}, 3\ns_add_u32 s{S_GRP}, s{S_GRP}, s{S_T2}")
        a(f"s_and_b32 s{S_MEM}, s{S_T0}, 1\ns_lshl_b32 s{S_MEM}, s{S_MEM}, 3\ns_lshr_b32 s{S_T1}, s{S_T1}, 2\ns_add_u32 s{S_MEM}, s{S_MEM}, s{S_T1}")
    a(f"s_and_b32 s{S_RH}, s{S_MEM}, 1\ns_lshr_b32 s{S_CB}, s{S_MEM}, 1")
    a(f"v_lshlrev_b32 v{V_L16}, 4, v0")

def rot_setup(a, stride, base_sreg):
    for i in range(4):
        a(f"s_add_u32 s{S_T0}, s{S_WAVE}, {i+1}\ns_and_b32 s{S_T0}, s{S_T0}, 3")
        a(f"s_mul_i32 s{S_RT+i}, s{S_T0}, {stride}\ns_add_u32 s{S_RT+i}, s{S_RT+i}, s{base_sreg}")
        if i < 3: a(f"s_mul_i32 s{S_LW+i}, s{S_T0}, 15360\ns_add_u32 s{S_LW+i}, s{S_LW+i}, {L_RED + 5120*i}")

def h_addr(a, T):
    a(f"s_mul_i32 s{S_T0}, s{S_GRP}, {160*1024}\ns_lshl_b32 s{S_T1}, s{S_RH}, 2\ns_add_u32 s{S_T1}, s{S_T1}, s{S_WAVE}\ns_lshl_b32 s{S_T1}, s{S_T1}, 10")
    a(f"s_add_u32 s{S_T0}, s{S_T0}, s{S_T1}\ns_add_u32 s{S_T0}, s{S_T0}, {HBUF}\ns_mul_i32 s{S_T1}, s{S_CB}, 10")
    a(f"v_lshrrev_b32 v{T}, 4, v0\nv_and_b32 v{T+1}, 15, v0\nv_lshl_add_u32 v{T+1}, v{T+1}, 4, s{S_T0}")
    for q in range(3):
        a(f"v_add3_u32 v{T+2}, v{T}, s{S_T1}, {4*q}")
        a(f"v_lshrrev_b32 v{T+3}, 2, v{T+2}\nv_and_b32 v{T+2}, 3, v{T+2}")
        a(f"v_lshl_add_u32 v{T+2}, v{T+2}, 8, v{T+1}\nv_lshl_add_u32 v{V_HA+q}, v{T+3}, 13, v{T+2}")

def row_major_addr(a, d, T):
    a(f"s_lshl_b32 s{S_T0}, s{S_GRP}, 7\ns_lshl_b32 s{S_T1}, s{S_RH}, 6\ns_add_u32 s{S_T0}, s{S_T0}, s{S_T1}\ns_lshl_b32 s{S_T1}, s{S_WAVE}, 4\ns_add_u32 s{S_T0}, s{S_T0}, s{S_T1}")
    a(f"s_mul_i32 s{S_T0}, s{S_T0}, 1280\ns_mul_i32 s{S_T1}, s{S_CB}, 160\ns_add_u32 s{S_T0}, s{S_T0}, s{S_T1}")
    a(f"v_and_b32 v{T}, 15, v0\nv_mul_u32_u24 v{T}, 1280, v{T}\nv_add_u32 v{T}, s{S_T0}, v{T}")
    a(f"v_lshrrev_b32 v{T+1}, 4, v0\nv_lshl_add_u32 v{d}, v{T+1}, 4, v{T}")
    a(f"v_bfe_u32 v{T+1}, v0, 4, 1\nv_lshl_add_u32 v{T}, v{T+1}, 4, v{T}\nv_lshrrev_b32 v{T+1}, 5, v0\nv_lshl_add_u32 v{T}, v{T+1}, 3, v{T}")
    a(f"v_add_u32 v{d+1}, 128, v{T}")

def add_packed(a, acc, pkd, T):
    for k in range(10):
        a(f"v_lshlrev_b32 v{T}, 16, v{pkd+k}\nv_and_b32 v{T+1}, 0xffff0000, v{pkd+k}")
        a(pk("v_pk_add_f32", acc + 2*k, acc + 2*k, T))

def red_write(a, lg, acc, step, T):
    ops = [lambda: a(f"v_add_u32 v{T}, s{S_LW+step}, v{V_L16}")]
    for t in range(5):
        ops.append(lambda t=t: lg.issue(f"ds_write_b128 v{T}, {vr(acc+4*t,4)} offset:{1024*t}", ("W", step)))
    return ops

def red_read(a, lg, dst, T):
    ops = [lambda: a(f"s_mul_i32 s{S_T0}, s{S_WAVE}, 15360\ns_add_u32 s{S_T0}, s{S_T0}, {L_RED}\nv_add_u32 v{T}, s{S_T0}, v{V_L16}")]
    for k in range(15):
        ops.append(lambda k=k: lg.issue(f"ds_read_b128 {vr(dst+4*k,4)}, v{T} offset:{1024*k}", ("R", k)))
    return ops

def red_sum(a, lg, acc, src):
    lg.wait(("R", 14))
    for k in range(10):
        a(pk("v_pk_add_f32", src + 2*k, src + 2*k, src + 20 + 2*k))
        a(pk("v_pk_add_f32", acc + 2*k, acc + 2*k, src + 40 + 2*k))
        a(pk("v_pk_add_f32", acc + 2*k, acc + 2*k, src + 2*k))

P2_KV, P2_PQ, P2_N, P2_O, P2_AC, P2_WF, P2_X, P2_T = 16, 80, 128, 152, 172, 212, 232, 244

def p2_prefetch_wo(a, vm):
    a(f"s_lshl_b32 s{S_T0}, s{S_CB}, 2\ns_add_u32 s{S_T0}, s{S_T0}, s{S_WAVE}\ns_mul_i32 s{S_T0}, s{S_T0}, 25600\ns_add_u32 s{S_T0}, s{S_T0}, {WOS}")
    a(f"s_mul_i32 s{S_T1}, s{S_WAVE}, 25600")
    for i in range(25):
        if i % 4 == 0:
            if i: a(f"s_add_u32 s{S_T0}, s{S_T0}, 4096")
            a(f"s_add_u32 m0, s{S_T1}, {1024*i}")
        vm.issue(f"buffer_load_dwordx4 v{V_L16}, s[{S_WS}:{S_WS+3}], s{S_T0} offen offset:{1024*(i%4)} sc1 lds", "wo")

def p2_load_x(a, vm):
    T = P2_T
    row_major_addr(a, T + 2, T)
    vm.issue(f"buffer_load_dwordx4 {vr(P2_X,4)}, v{T+2}, s[{S_X}:{S_X+3}], 0 offen")
    vm.issue(f"buffer_load_dwordx4 {vr(P2_X+4,4)}, v{T+2}, s[{S_X}:{S_X+3}], 0 offen offset:64")
    vm.issue(f"buffer_load_dwordx2 {vr(P2_X+8,2)}, v{T+3}, s[{S_X}:{S_X+3}], 0 offen", "x")

def phase2(a, vm):
    T = P2_T
    lg = Counter(a, "lgkmcnt", 15)
    RAW = P2_N
    a(f"s_lshl_b32 s{S_T0}, s{S_WAVE}, 14\ns_add_u32 s{S_T0}, s{S_T0}, {KVACC}")
    for f in range(16):
        if f and f % 4 == 0: a(f"s_add_u32 s{S_T0}, s{S_T0}, 4096")
        vm.issue(f"buffer_load_dwordx4 {vr(RAW+4*f,4)}, v{V_L16}, s[{S_WS}:{S_WS+3}], s{S_T0} offen offset:{1024*(f%4)} sc1", ("kv", f))
    a(f"s_lshl_b32 s{S_T0}, s{S_GRP}, 3\ns_lshl_b32 s{S_T1}, s{S_RH}, 2\ns_add_u32 s{S_T0}, s{S_T0}, s{S_T1}\ns_lshl_b32 s{S_T0}, s{S_T0}, 2")
    a(f"s_add_u32 s{S_T0}, s{S_T0}, s{S_WAVE}\ns_mul_i32 s{S_T0}, s{S_T0}, 5120\ns_add_u32 s{S_T3}, s{S_T0}, {PQ}")
    rot_setup(a, 4 * 5120, S_T3)
    UREG = (0, 4, 10, 16, 20)
    def load_pq(step):
        ops = []
        b = P2_PQ + 24 * (step & 1)
        for u in range(5):
            if u == 4: ops.append(lambda: a(f"s_add_u32 s{S_RT+step}, s{S_RT+step}, 4096"))
            ops.append(lambda u=u: vm.issue(f"buffer_load_dwordx4 {vr(b+UREG[u],4)}, v{V_L16}, s[{S_WS}:{S_WS+3}], s{S_RT+step} offen offset:{1024*(u&3)} sc1", ("pq", step)))
        return ops
    for st in range(2):
        for f in load_pq(st): f()
    for i in range(4):
        m = 0xFFFF << (16 * i)
        a(f"s_mov_b32 s{S_MASK+2*i}, {m & 0xffffffff}\ns_mov_b32 s{S_MASK+2*i+1}, {m >> 32}")
    for par in range(2):
        m = 0x33333333 << (2 * par)
        a(f"s_mov_b32 s{S_MASK+8+2*par}, {m}\ns_mov_b32 s{S_MASK+9+2*par}, {m}")
    h_addr(a, T)
    a(f"s_mul_i32 s{S_T0}, s{S_WAVE}, 25600\nv_add_u32 v{T+4}, s{S_T0}, v{V_L16}")
    KA = lambda h: P2_KV + 8 * h; KB = lambda h: P2_KV + 8 * h + 4
    for m in range(2):
        R = lambda f: RAW + 32 * m + 4 * f
        vm.wait(("kv", 8 * m + 7))
        for f in (4, 5, 6, 7):
            a(f"v_cvt_pk_bf16_f32 v{R(f)}, v{R(f)}, v{R(f)+1}\nv_cvt_pk_bf16_f32 v{R(f)+1}, v{R(f)+2}, v{R(f)+3}")
        for i in range(4):
            h = 4 * m + i; c = 2 * (i & 1); t4 = 2 - c
            gm = f"s[{S_MASK+2*i}:{S_MASK+2*i+1}]"; pm = f"s[{S_MASK+8+2*(i&1)}:{S_MASK+9+2*(i&1)}]"
            a(f"v_cvt_pk_bf16_f32 v{KA(h)+c}, v{R(i)}, v{R(i)+1}\nv_cvt_pk_bf16_f32 v{KA(h)+c+1}, v{R(i)+2}, v{R(i)+3}")
            for q in range(2):
                a(f"v_cndmask_b32 v{KA(h)+t4+q}, 0, v{R(4)+q}, {gm}")
                a(f"v_cndmask_b32 v{KB(h)+c+q}, 0, v{R(5+(i>>1))+q}, {pm}")
                a(f"v_cndmask_b32 v{KB(h)+t4+q}, 0, v{R(7)+q}, {gm}")
    WIN = (0, 2, 6, 8, 12, 14, 18, 20)
    def attn(step):
        b = P2_PQ + 24 * (step & 1)
        vm.wait(("pq", step))
        for q in range(2):
            a(f"v_mov_b32 v{b+8+q}, v{b+2+q}\nv_mov_b32 v{b+14+q}, v{b+20+q}")
        def mm(p):
            n = P2_N + 12 * (p & 1)
            for k in range(2):
                a(f"{MF} {vr(n+4*k,4)}, {vr(KA(2*p+k),4)}, {vr(b+WIN[2*p+k],4)}, 0")
                a(f"{MF} {vr(n+8,4)}, {vr(KB(2*p+k),4)}, {vr(b+WIN[2*p+k],4)}, {vr(n+8,4) if k else 0}")
        def fin(p):
            n = P2_N + 12 * (p & 1)
            for k in range(2): a(f"v_add_f32 v{n+9+2*k}, {EPS6}, v{n+9+2*k}")
            for k in range(2): a(f"v_rcp_f32 v{n+9+2*k}, v{n+9+2*k}")
            for k in range(2):
                for r in range(4): a(f"v_mul_f32 v{n+4*k+r}, v{n+4*k+r}, v{n+9+2*k}")
                a(f"v_mul_f32 v{n+8+2*k}, v{n+8+2*k}, v{n+9+2*k}")
            for k in range(4): a(f"v_cvt_pk_bf16_f32 v{P2_O+4*p+k}, v{n+2*k}, v{n+2*k+1}")
            a(f"v_cvt_pk_bf16_f32 v{P2_O+16+p}, v{n+8}, v{n+10}")
        mm(0)
        for p in range(4):
            if p < 3: mm(p + 1)
            fin(p)
    def gemm(step, fill):
        acc = P2_AC + 20 * (step & 1)
        def rd(i): lg.issue(f"ds_read_b128 {vr(P2_WF+4*(i%5),4)}, v{T+4} offset:{1024*i}", ("wf", step, i))
        for i in range(4): rd(i)
        for i in range(25):
            ks, ct = divmod(i, 5)
            if i + 4 < 25: rd(i + 4)
            lg.wait(("wf", step, i))
            a(f"{MF} {vr(acc+4*ct,4)}, {vr(P2_WF+4*(i%5),4)}, {vr(P2_O+4*ks,4)}, {vr(acc+4*ct,4) if ks else 0}")
            if fill: fill.pop(0)()
        for f in fill: f()
    vm.wait("wo")
    for step in range(4):
        attn(step)
        fill = []
        if step + 2 < 4: fill += load_pq(step + 2)
        if step > 0: fill += red_write(a, lg, P2_AC + 20 * ((step - 1) & 1), step - 1, T + 5)
        gemm(step, fill)
    acc = P2_AC + 20
    lg.drain()
    a("s_barrier")
    for f in red_read(a, lg, P2_KV, T + 5): f()
    vm.wait("x")
    add_packed(a, acc, P2_X, T + 6)
    red_sum(a, lg, acc, P2_KV)
    for k in range(10): a(f"v_cvt_pk_bf16_f32 v{V_HRES+k}, v{acc+2*k}, v{acc+2*k+1}")
    U = P2_O
    a(f"v_mov_b32 v{U}, v{V_HRES+8}\nv_mov_b32 v{U+1}, v{V_HRES+9}\nv_mov_b32 v{U+4}, v{V_HRES+8}\nv_mov_b32 v{U+5}, v{V_HRES+9}")
    vm.issue(f"buffer_store_dwordx4 {vr(V_HRES,4)}, v{V_HA}, s[{S_WS}:{S_WS+3}], 0 offen sc1")
    vm.issue(f"buffer_store_dwordx4 {vr(V_HRES+4,4)}, v{V_HA+1}, s[{S_WS}:{S_WS+3}], 0 offen sc1")
    a(f"v_permlane32_swap_b32 v{U+4}, v{U+2}\nv_permlane32_swap_b32 v{U+5}, v{U+3}")
    a("s_mov_b32 exec_hi, 0")
    vm.issue(f"buffer_store_dwordx4 {vr(U,4)}, v{V_HA+2}, s[{S_WS}:{S_WS+3}], 0 offen sc1")
    a("s_mov_b64 exec, -1")
    ST = P2_N
    a(f"s_mov_b32 s{S_C}, {ONES2}\nv_mov_b32 v{ST}, 0\nv_mov_b32 v{ST+1}, 0")
    for k in range(10):
        a(f"v_dot2c_f32_bf16 v{ST}, s{S_C}, v{V_HRES+k}\nv_dot2c_f32_bf16 v{ST+1}, v{V_HRES+k}, v{V_HRES+k}")
    group_allreduce_add(a, [ST, ST + 1], ST + 2)
    a(f"s_lshl_b32 s{S_T0}, s{S_GRP}, 3\ns_add_u32 s{S_T0}, s{S_T0}, s{S_CB}\ns_lshl_b32 s{S_T0}, s{S_T0}, 3\ns_lshl_b32 s{S_T1}, s{S_RH}, 2")
    a(f"s_add_u32 s{S_T0}, s{S_T0}, s{S_T1}\ns_add_u32 s{S_T0}, s{S_T0}, s{S_WAVE}\ns_lshl_b32 s{S_T0}, s{S_T0}, 7\ns_add_u32 s{S_T0}, s{S_T0}, {STATS}")
    a(f"v_lshlrev_b32 v{ST+2}, 3, v0")
    a("s_mov_b64 exec, 0xffff")
    vm.issue(f"buffer_store_dwordx2 {vr(ST,2)}, v{ST+2}, s[{S_WS}:{S_WS+3}], s{S_T0} offen sc1")
    a("s_mov_b64 exec, -1")

P3_AC, P3_AF, P3_CS, P3_ST, P3_Q, P3_T = 16, 112, 176, 188, 220, 244

def load_wfrags(a, vm, sreg, base_code, tag):
    ops = [base_code]
    for i in range(60):
        if i and i % 4 == 0: ops.append(lambda: a(f"s_add_u32 s{sreg}, s{sreg}, 4096"))
        ops.append(lambda i=i: vm.issue(f"buffer_load_dwordx4 {ar(4*i,4)}, v{V_L16}, s[{S_WS}:{S_WS+3}], s{sreg} offen offset:{1024*(i%4)} sc1", (tag, i)))
    return ops

def w13_loads(a, vm, sreg):
    return load_wfrags(a, vm, sreg, lambda: a(f"s_lshl_b32 s{sreg}, s{S_MEM}, 2\ns_add_u32 s{sreg}, s{sreg}, s{S_WAVE}\ns_mul_i32 s{sreg}, s{sreg}, 61440\ns_add_u32 s{sreg}, s{sreg}, {W13S}"), "w13")

def w2_loads(a, vm, sreg):
    return load_wfrags(a, vm, sreg, lambda: a(f"s_lshl_b32 s{sreg}, s{S_CB}, 2\ns_add_u32 s{sreg}, s{sreg}, s{S_WAVE}\ns_mul_i32 s{sreg}, s{sreg}, 61440\ns_add_u32 s{sreg}, s{sreg}, {W2S}"), "w2")

def p3_colsum(a, vm):
    T = P3_T
    for q in range(4): a(f"v_mov_b32 v{T+q}, {ONES2}")
    for i in range(60):
        ks, t = divmod(i, 3)
        vm.wait(("w13", i))
        a(f"{MF} {vr(P3_CS+4*t,4)}, {ar(4*i,4)}, {vr(T,4)}, {vr(P3_CS+4*t,4) if ks else 0}")

def phase3(a, vm):
    T = P3_T
    lg = Counter(a, "lgkmcnt", 15)
    S_H, S_M = S_RT, S_RT + 1
    a(f"s_mul_i32 s{S_H}, s{S_GRP}, {160*1024}\ns_lshl_b32 s{S_M}, s{S_WAVE}, 11\ns_add_u32 s{S_H}, s{S_H}, s{S_M}\ns_add_u32 s{S_H}, s{S_H}, {HBUF}")
    def dma(ks):
        return [lambda: a(f"s_add_u32 m0, s{S_M}, {8192*ks}"),
                lambda: vm.issue(f"buffer_load_dwordx4 v{V_L16}, s[{S_WS}:{S_WS+3}], s{S_H} offen sc1 lds"),
                lambda: vm.issue(f"buffer_load_dwordx4 v{V_L16}, s[{S_WS}:{S_WS+3}], s{S_H} offen offset:1024 sc1 lds", ("h", ks)),
                lambda: a(f"s_add_u32 s{S_H}, s{S_H}, 8192")]
    AHEAD = 6
    for ks in range(AHEAD):
        for f in dma(ks): f()
    a(f"s_lshl_b32 s{S_T0}, s{S_GRP}, 13\ns_add_u32 s{S_T0}, s{S_T0}, {STATS}\nv_lshlrev_b32 v{T}, 3, v0")
    stat = []
    for cb in range(8):
        if cb == 4: stat.append(lambda: a(f"s_add_u32 s{S_T0}, s{S_T0}, 4096"))
        for hf in range(2):
            stat.append(lambda cb=cb, hf=hf: vm.issue(f"buffer_load_dwordx2 {vr(P3_ST+4*cb+2*hf,2)}, v{T}, s[{S_WS}:{S_WS+3}], s{S_T0} offen offset:{1024*(cb&3)+512*hf} sc1", "st"))
    AD = (V_L16, T + 1, T + 2)
    a(f"v_add_u32 v{T+1}, 65536, v{V_L16}\nv_add_u32 v{T+2}, 131072, v{V_L16}")
    def rd(ks, rt):
        d = P3_AF + 32 * (ks & 1) + 4 * rt
        return lambda: lg.issue(f"ds_read_b128 {vr(d,4)}, v{AD[ks//8]} offset:{8192*(ks%8)+1024*rt}", ("A", ks, rt))
    def sync(ks):
        def f():
            vm.wait(("h", ks)); a("s_barrier")
        return f
    def mf(ks, rt, t):
        def f():
            lg.wait(("A", ks, rt))
            c = vr(P3_AC + 12 * rt + 4 * t, 4)
            a(f"{MF} {c}, {ar(12*ks+4*t,4)}, {vr(P3_AF+32*(ks&1)+4*rt,4)}, {c if ks else 0}")
        return f
    sync(1)()
    for rt in range(8): rd(0, rt)()
    for ks in range(20):
        fill = []
        if ks + 1 < 20:
            if (ks + 1) % 2 == 0: fill.append(sync(ks + 2))
            fill += [rd(ks + 1, rt) for rt in range(8)]
        if ks + AHEAD < 20: fill += dma(ks + AHEAD)
        if ks == 15: fill += stat
        interleave([mf(ks, rt, t) for rt in range(8) for t in range(3)], fill, 1)
    vm.wait("st")
    for cb in range(1, 8):
        for hf in range(2): a(pk("v_pk_add_f32", P3_ST + 2*hf, P3_ST + 2*hf, P3_ST + 4*cb + 2*hf))
    Q = lambda q, rt: P3_Q + 8 * q + rt
    for hf in range(2):
        s = P3_ST + 2 * hf
        m, v, c = Q(0, 4*hf), Q(1, 4*hf), Q(2, 4*hf)
        a(f"v_mul_f32 v{m}, {INV640}, v{s}\nv_mul_f32 v{v}, {INV640}, v{s+1}\nv_fma_f32 v{v}, -v{m}, v{m}, v{v}")
        a(f"v_max_f32 v{v}, 0, v{v}\nv_add_f32 v{v}, {EPS5}, v{v}\nv_rsq_f32 v{c}, v{v}\nv_mul_f32 v{c}, {LOG2E | 0x80000000}, v{c}")
    bases = [Q(q, 4*hf) for q in range(3) for hf in range(2)]
    for b in bases: a(f"v_mov_b32 v{b+2}, v{b}")
    for b in bases: a(f"v_permlane32_swap_b32 v{b}, v{b+2}")
    for b in bases: a(f"v_mov_b32 v{b+1}, v{b}\nv_mov_b32 v{b+3}, v{b+2}")
    for b in bases: a(f"v_permlane16_swap_b32 v{b}, v{b+1}\nv_permlane16_swap_b32 v{b+2}, v{b+3}")
    O = P3_AF
    a(f"s_lshl_b32 s{S_T0}, s{S_GRP}, 3\ns_mul_i32 s{S_T0}, s{S_T0}, 49152\ns_lshl_b32 s{S_T1}, s{S_MEM}, 2\ns_add_u32 s{S_T1}, s{S_T1}, s{S_WAVE}")
    a(f"s_mul_i32 s{S_T1}, s{S_T1}, 768\ns_add_u32 s{S_T0}, s{S_T0}, s{S_T1}\ns_add_u32 s{S_T0}, s{S_T0}, {HH}")
    a(f"v_lshrrev_b32 v{T}, 4, v0\nv_mul_u32_u24 v{T}, 49152, v{T}\nv_and_b32 v{T+1}, 15, v0\nv_lshl_add_u32 v{T}, v{T+1}, 4, v{T}")
    E = T + 2
    for hf in range(2):
        for t in range(3):
            for k in range(4):
                rt = 4 * hf + k; c = P3_AC + 12 * rt + 4 * t
                for h in range(2): a(pk("v_pk_fma_f32", c + 2*h, ("b", Q(0, rt)), P3_CS + 4*t + 2*h, c + 2*h, neg0=True))
                a(pk("v_pk_mul_f32", E, c, ("b", Q(2, rt))))
                a(f"v_exp_f32 v{E}, v{E}\nv_exp_f32 v{E+1}, v{E+1}")
                a(pk("v_pk_mul_f32", c, c, c + 2))
                a(pk("v_pk_fma_f32", E, E, ("b", Q(1, rt)), ("b", Q(1, rt))))
                a(f"v_rcp_f32 v{E}, v{E}\nv_rcp_f32 v{E+1}, v{E+1}")
                a(pk("v_pk_mul_f32", c, c, E))
                a(f"v_cvt_pk_bf16_f32 v{O+12*hf+4*t+k}, v{c}, v{c+1}")
            o = O + 12 * hf + 4 * t
            a(f"v_permlane32_swap_b32 v{o}, v{o+2}\nv_permlane32_swap_b32 v{o+1}, v{o+3}")
            a(f"v_permlane16_swap_b32 v{o}, v{o+1}\nv_permlane16_swap_b32 v{o+2}, v{o+3}")
            vm.issue(f"buffer_store_dwordx4 {vr(o,4)}, v{T}, s[{S_WS}:{S_WS+3}], s{S_T0} offen offset:{256*t} sc1")
        if hf == 0: a(f"s_add_u32 s{S_T0}, s{S_T0}, {4*49152}")

P4_AF, P4_AC, P4_T = 16, 208, 248

def p4_load_h(a, vm):
    T = P4_T
    h_addr(a, T)
    vm.issue(f"buffer_load_dwordx4 {vr(V_HRES,4)}, v{V_HA}, s[{S_WS}:{S_WS+3}], 0 offen sc1")
    vm.issue(f"buffer_load_dwordx4 {vr(V_HRES+4,4)}, v{V_HA+1}, s[{S_WS}:{S_WS+3}], 0 offen sc1")
    a(f"v_mov_b32 v{T}, v{V_HA+2}\nv_mov_b32 v{T+1}, v{V_HA+2}")
    a(f"v_permlane32_swap_b32 v{T}, v{T+1}")
    a(f"v_lshrrev_b32 v{T+1}, 5, v0\nv_lshl_add_u32 v{T}, v{T+1}, 3, v{T}")
    vm.issue(f"buffer_load_dwordx2 {vr(V_HRES+8,2)}, v{T}, s[{S_WS}:{S_WS+3}], 0 offen sc1", "hres")

def phase4(a, vm):
    T = P4_T
    lg = Counter(a, "lgkmcnt", 15)
    a(f"s_lshl_b32 s{S_T0}, s{S_GRP}, 3\ns_lshl_b32 s{S_T1}, s{S_RH}, 2\ns_add_u32 s{S_T0}, s{S_T0}, s{S_T1}\ns_mul_i32 s{S_T0}, s{S_T0}, 49152")
    a(f"s_mul_i32 s{S_T1}, s{S_WAVE}, 12288\ns_add_u32 s{S_T0}, s{S_T0}, s{S_T1}\ns_add_u32 s{S_T3}, s{S_T0}, {HH}")
    rot_setup(a, 49152, S_T3)
    loads = []
    for step in range(4):
        for ks in range(12):
            def f(step=step, ks=ks):
                if ks and ks % 4 == 0: a(f"s_add_u32 s{S_RT+step}, s{S_RT+step}, 4096")
                vm.issue(f"buffer_load_dwordx4 {vr(P4_AF+48*step+4*ks,4)}, v{V_L16}, s[{S_WS}:{S_WS+3}], s{S_RT+step} offen offset:{1024*(ks%4)} sc1", ("hh", step, ks))
            loads.append(f)
    AHEAD = 10
    for f in loads[:AHEAD]: f()
    loads = loads[AHEAD:]
    srd(a, S_O, P_OUT, 2048 * 1280)
    row_major_addr(a, T + 2, T)
    for step in range(4):
        acc = P4_AC + 20 * (step & 1)
        extra = []
        if step > 0: extra += red_write(a, lg, P4_AC + 20 * ((step - 1) & 1), step - 1, T + 4)
        if step == 3:
            def bar():
                lg.drain(); a("s_barrier")
            extra += [bar] + red_read(a, lg, P4_AF, T + 4)
        for ks in range(12):
            vm.wait(("hh", step, ks))
            if step == 0: vm.wait(("w2", 5 * ks + 4))
            for ct in range(5):
                a(f"{MF} {vr(acc+4*ct,4)}, {ar(20*ks+4*ct,4)}, {vr(P4_AF+48*step+4*ks,4)}, {vr(acc+4*ct,4) if ks else 0}")
                if ct == 0 and loads: loads.pop(0)()
                elif ct >= 2 and ks >= 1 and extra: extra.pop(0)()
        assert not extra
    acc = P4_AC + 20
    if "hres" in vm.tags: vm.wait("hres")
    red_sum(a, lg, acc, P4_AF)
    add_packed(a, acc, V_HRES, T + 4)
    O = P4_AF
    for k in range(10): a(f"v_cvt_pk_bf16_f32 v{O+k}, v{acc+2*k}, v{acc+2*k+1}")
    vm.issue(f"buffer_store_dwordx4 {vr(O,4)}, v{T+2}, s[{S_O}:{S_O+3}], 0 offen")
    vm.issue(f"buffer_store_dwordx4 {vr(O+4,4)}, v{T+2}, s[{S_O}:{S_O+3}], 0 offen offset:64")
    vm.issue(f"buffer_store_dwordx2 {vr(O+8,2)}, v{T+3}, s[{S_O}:{S_O+3}], 0 offen")
```

```python
import sys
from common import *
import p1, p234

def build(mapping="R8", extra_nop_launches=0):
    names = ["p1_kernel", "p2_kernel", "p3_kernel", "p4_kernel"]
    bodies = []
    for n in names:
        a = Asm(); a._uid = 1000 * (names.index(n) + 1)
        a(kernel_header(n))
        end = f"L{n}_end"
        prologue(a, end)
        vm = Counter(a, "vmcnt", 63)
        if n == "p1_kernel":
            p1.phase1(a, end)
        else:
            p234.ids(a, mapping)
            if n == "p2_kernel":
                p234.p2_prefetch_wo(a, vm); p234.p2_load_x(a, vm); p234.phase2(a, vm)
            if n == "p3_kernel":
                for f in p234.w13_loads(a, vm, 59): f()
                p234.p3_colsum(a, vm); p234.phase3(a, vm)
            if n == "p4_kernel":
                p234.p4_load_h(a, vm)
                vm.drain()
                ws = p234.w2_loads(a, vm, 59)
                for f in ws: f()
                vm.wait(("w2", 20))
                p234.phase4(a, vm)
        a(f"{end}:\ns_endpgm")
        nops = a.fix_hazards()
        print(n, "instructions", sum(isinstance(i, Ins) for i in a.items), "wait states added", nops, file=sys.stderr)
        bodies.append(a.text())
    launches = list(names)
    if extra_nop_launches:
        bodies.append(kernel_header("nop_kernel") + "\n    s_endpgm\n")
        launches += ["nop_kernel"] * extra_nop_launches
        names = names + ["nop_kernel"]
    hdr = "".join(f"; @launch kernel={n} grid=(256,1,1) block=(256,1,1) lds=163840\n" for n in launches)
    txt = hdr + '.amdgcn_target "amdgcn-amd-amdhsa--gfx950"\n.text\n' + "".join(bodies) + '.section .rodata,"a"\n'
    for n in names: txt += kernel_desc(n, 512, 102, 256)
    return txt

if __name__ == "__main__":
    open(sys.argv[1], "w").write(build(*(sys.argv[2:3] or ["R8"]), extra_nop_launches=int(sys.argv[3]) if len(sys.argv) > 3 else 0))
```
